```python
import torch

def _softmax(x, axis=-1):
    return torch.softmax(x, dim=axis)
def _gelu(x):
    return torch.nn.functional.gelu(x, approximate="tanh")
def _silu(x):
    return torch.nn.functional.silu(x)
def _sigmoid(x):
    return torch.sigmoid(x)
def _layernorm(x, axis=-1, eps=1e-5):
    m = x.mean(dim=axis, keepdim=True)
    v = x.var(dim=axis, keepdim=True, unbiased=False)
    return (x - m) / torch.sqrt(v + eps)
def _scatter_add(tgt, idx, src, axis=0):
    return tgt.clone().index_add_(axis, idx, src)
def _segment_sum(src, seg, n):
    out = torch.zeros((n,) + src.shape[1:], dtype=src.dtype)
    return out.index_add_(0, seg, src)
def _pad(x, pw):
    flat = tuple(v for pair in reversed(pw) for v in pair)
    return torch.nn.functional.pad(x, flat)

kernel_name = 'recurrent_scan__compressed_kv_cla__dense_activation_mish__prompt'

def setup_inputs():

    _w = (lambda a: (lambda t: t.to(torch.bfloat16) if t.is_floating_point() else t)(torch.as_tensor(a)))
    def _A_setup():
        B, H, Sq, Sk, D, M = 1, 16, 2048, 2048, 256, 448
        Dc = 4 * D
        return {
            "x": _w((lambda *s: torch.randn(*s, dtype=torch.bfloat16) * 0.05)(B, Sq, M)),
            "c_kv": _w((lambda *s: torch.randn(*s, dtype=torch.bfloat16) * 0.8)(B, Sk, Dc)),
            "w_q": _w((lambda *s: torch.randn(*s, dtype=torch.bfloat16) * 1.6)(M, H, D) * (M ** -0.5)),
            "w_uk": _w((lambda *s: torch.randn(*s, dtype=torch.bfloat16) * 1.6)(Dc, H, D) * (Dc ** -0.5)),
            "w_uv": _w((lambda *s: torch.randn(*s, dtype=torch.bfloat16) * 0.8)(Dc, H, D) * (Dc ** -0.5)),
            "w_o": _w((lambda *s: torch.randn(*s, dtype=torch.bfloat16) * 0.8)(H, D, M) * ((H * D) ** -0.5)),
        }
    _A_in = _A_setup()

    def _B_setup():
        B, S, D, F = 1, 2048, 448, 1792
        return {
            "x": _w((lambda *s: torch.randn(*s, dtype=torch.bfloat16) * 0.05)(B, S, D)),
            "w1": _w((lambda *s: torch.randn(*s, dtype=torch.bfloat16) * 0.8)(D, F) * (D ** -0.5)),
            "b1": _w((lambda *s: torch.randn(*s, dtype=torch.bfloat16) * 0.8)(F)),
            "w2": _w((lambda *s: torch.randn(*s, dtype=torch.bfloat16) * 0.2)(F, D) * (F ** -0.5)),
        }
    _B_in = _B_setup()

    return {
        "A_x": _A_in["x"],
        "A_c_kv": _A_in["c_kv"],
        "A_w_q": _A_in["w_q"],
        "A_w_uk": _A_in["w_uk"],
        "A_w_uv": _A_in["w_uv"],
        "A_w_o": _A_in["w_o"],
        "B_x": _B_in["x"],
        "B_w1": _B_in["w1"],
        "B_b1": _B_in["b1"],
        "B_w2": _B_in["w2"],
    }

def reference(A_x, A_c_kv, A_w_q, A_w_uk, A_w_uv, A_w_o, B_x, B_w1, B_b1, B_w2):
    def _A_ref(x, c_kv, w_q, w_uk, w_uv, w_o):
        B, Sq, M = x.shape[0], x.shape[1], x.shape[2]
        Sk = c_kv.shape[1]
        H, D = w_q.shape[1], w_q.shape[2]
        q = torch.einsum("bqm,mhd->bhqd", x, w_q)
        k = torch.einsum("bkc,chd->bhkd", c_kv, w_uk)
        v = torch.einsum("bkc,chd->bhkd", c_kv, w_uv)
        scores = torch.einsum("bhqd,bhkd->bhqk", q, k) * (D ** -0.5)
        off = Sk - Sq
        qi = torch.arange(Sq)[:, None]
        kj = torch.arange(Sk)[None, :]
        cmask = kj <= (qi + off)
        scores = torch.where(cmask[None, None], scores, -1e9)
        p = _softmax(scores, axis=-1)
        ctx = torch.einsum("bhqk,bhkd->bhqd", p, v)
        return torch.einsum("bhqd,hdm->bqm", ctx, w_o)

    def _B_ref(x, w1, b1, w2):
        h = torch.einsum("bsd,df->bsf", x, w1) + b1
        sp = torch.log1p(torch.exp(-torch.abs(h))) + torch.where(h > 0, h, torch.zeros_like(h))
        act = h * torch.tanh(sp)
        return torch.einsum("bsf,fd->bsd", act, w2)

    x = A_x
    xn = _layernorm(x, axis=-1)
    s = _A_ref(xn, A_c_kv, A_w_q, A_w_uk, A_w_uv, A_w_o)
    g = _silu(_B_ref(xn, B_w1, B_b1, B_w2))
    return x + s * g
```

```python
class Asm:
    def __init__(self):
        self.lines = []
        self.uid = 0
    def __call__(self, s):
        for l in s.strip("\n").split("\n"):
            self.lines.append("    " + l.strip())
    def label(self, name):
        self.lines.append(name + ":")
    def newlabel(self, p="L"):
        self.uid += 1
        return f"{p}_{self.uid}"
    def raw(self, s):
        self.lines.append(s)
    def text(self):
        return "\n".join(self.lines) + "\n"

def kernel_header(name):
    return f""".globl {name}
.p2align 8
.type {name},@function
{name}:
"""

def kernel_desc(name, vgpr, sgpr=102, accum=None, wgy=False):
    if accum is None:
        accum = (vgpr + 3) // 4 * 4
        if accum > 256: accum = 256
    s = f""".section .rodata,"a"
.p2align 6
.amdhsa_kernel {name}
  .amdhsa_next_free_vgpr {vgpr}
  .amdhsa_next_free_sgpr {sgpr}
  .amdhsa_accum_offset {accum}
  .amdhsa_group_segment_fixed_size 0
  .amdhsa_kernarg_size 104
  .amdhsa_user_sgpr_count 2
  .amdhsa_user_sgpr_kernarg_segment_ptr 1
  .amdhsa_system_sgpr_workgroup_id_x 1
"""
    if wgy:
        s += "  .amdhsa_system_sgpr_workgroup_id_y 1\n"
    s += ".end_amdhsa_kernel\n"
    return s

ARG = dict(x=0, ckv=8, wq=16, wuk=24, wuv=32, wo=40, bx=48, w1=56, b1=64, w2=72, out=80, dbg=88, ws=96)
XN_OFF  = 0x0000000
Q_OFF   = 0x0200000
K_OFF   = 0x1200000
V_OFF   = 0x2200000
ACT_OFF = 0x3200000
CTX_OFF = 0x3A00000
```

```python
from asmlib import *

O = 0
S = 128
P = 160
KA = 176
VA = 192
DK = 200
DV = 208
T = 216
M_, L_, AL = 240, 241, 242
LANE, QIDX = 243, 244
KF = 64
VF = 80
LOG2E_SC = 1.4426950408889634 / 16.0

def gen_attn():
    a = Asm()
    name = "attn_kernel"
    a.raw(kernel_header(name))
    a(f"""
    s_cmp_ge_u32 s2, 256
    s_cbranch_scc1 at_done
    s_load_dwordx2 s[4:5], s[0:1], {ARG['ws']}
    v_lshrrev_b32 v{T}, 6, v0
    v_and_b32 v{LANE}, 63, v0
    s_nop 0
    v_readfirstlane_b32 s24, v{T}        ; wave
    s_and_b32 s20, s2, 15                 ; head
    s_lshr_b32 s21, s2, 4
    s_sub_u32 s21, 15, s21                ; qb
    s_waitcnt lgkmcnt(0)
    s_lshl_b32 s22, s20, 20               ; head*1MB
    s_add_u32 s23, s22, {Q_OFF}
    s_add_u32 s8, s4, s23
    s_addc_u32 s9, s5, 0
    s_mov_b32 s10, {1<<20}
    s_mov_b32 s11, 0x20000
    s_add_u32 s23, s22, {K_OFF}
    s_add_u32 s12, s4, s23
    s_addc_u32 s13, s5, 0
    s_mov_b32 s14, {1<<20}
    s_mov_b32 s15, 0x20000
    s_add_u32 s23, s22, {V_OFF}
    s_add_u32 s16, s4, s23
    s_addc_u32 s17, s5, 0
    s_mov_b32 s18, {1<<20}
    s_mov_b32 s19, 0x20000
    s_add_u32 s28, s4, {CTX_OFF}
    s_addc_u32 s29, s5, 0
    s_mov_b32 s30, {2048*8192}
    s_mov_b32 s31, 0x20000
    s_lshl_b32 s25, s21, 7
    s_lshl_b32 s26, s24, 5
    s_add_u32 s25, s25, s26
    v_and_b32 v{T}, 31, v{LANE}
    v_add_u32 v{QIDX}, s25, v{T}
    v_lshlrev_b32 v{T+1}, 9, v{QIDX}
    v_lshrrev_b32 v{T+2}, 5, v{LANE}
    v_lshl_add_u32 v{T+1}, v{T+2}, 4, v{T+1}
    """)
    for ks in range(16):
        a(f"buffer_load_dwordx4 a[{ks*4}:{ks*4+3}], v{T+1}, s[8:11], 0 offen offset:{ks*32}")
    for jl in range(8):
        a(f"""
        s_lshl_b32 s26, s24, 3
        s_add_u32 s26, s26, {jl}
        s_lshl_b32 s26, s26, 1
        v_lshrrev_b32 v{T+2}, 5, v{LANE}
        v_add_u32 v{T+2}, s26, v{T+2}       ; key
        v_and_b32 v{T+3}, 31, v{LANE}
        v_and_b32 v{T+4}, 15, v{T+2}
        v_xor_b32 v{T+4}, v{T+4}, v{T+3}
        v_lshlrev_b32 v{T+5}, 9, v{T+2}
        v_lshl_add_u32 v{DK+jl}, v{T+4}, 4, v{T+5}
        v_and_b32 v{T+4}, 3, v{T+2}
        v_lshlrev_b32 v{T+4}, 2, v{T+4}
        v_xor_b32 v{T+4}, v{T+4}, v{T+3}
        v_lshl_add_u32 v{DV+jl}, v{T+4}, 4, v{T+5}
        """)
    a(f"""
    v_and_b32 v{T+2}, 31, v{LANE}
    v_and_b32 v{T+3}, 15, v{LANE}
    v_lshrrev_b32 v{T+4}, 5, v{LANE}
    v_lshlrev_b32 v{T+2}, 9, v{T+2}
    """)
    for k8 in range(8):
        a(f"""
        v_add_u32 v{T+5}, {2*k8}, v{T+4}
        v_xor_b32 v{T+5}, v{T+5}, v{T+3}
        v_lshl_add_u32 v{KA+k8}, v{T+5}, 4, v{T+2}
        v_add_u32 v{KA+8+k8}, 0x10000, v{KA+k8}
        """)
    a(f"""
    v_bfe_u32 v{T+2}, v{LANE}, 2, 2        ; r
    v_lshrrev_b32 v{T+3}, 5, v{LANE}       ; half
    v_lshl_add_u32 v{T+3}, v{T+3}, 2, v{T+2}
    v_lshlrev_b32 v{T+3}, 9, v{T+3}
    v_add_u32 v{T+3}, 0x8000, v{T+3}
    v_bfe_u32 v{T+4}, v{LANE}, 4, 1
    v_lshlrev_b32 v{T+4}, 1, v{T+4}
    v_bfe_u32 v{T+5}, v{LANE}, 1, 1
    v_add_u32 v{T+4}, v{T+4}, v{T+5}       ; low2
    v_and_b32 v{T+5}, 1, v{LANE}
    v_lshlrev_b32 v{T+5}, 3, v{T+5}
    v_add_u32 v{T+3}, v{T+3}, v{T+5}
    """)
    for d4 in range(4):
        a(f"""
        v_xor_b32 v{T+5}, {d4}, v{T+2}
        v_lshl_add_u32 v{T+5}, v{T+5}, 2, v{T+4}
        v_lshl_add_u32 v{VA+d4}, v{T+5}, 4, v{T+3}
        v_add_u32 v{VA+4+d4}, 0x10000, v{VA+d4}
        """)
    for i in range(128):
        a(f"v_mov_b32 v{O+i}, 0")
    a(f"""
    v_mov_b32 v{M_}, 0xf149f2ca
    v_mov_b32 v{L_}, 0
    s_lshl_b32 s32, s24, 13
    s_mov_b32 s33, 0
    s_lshl_b32 s34, s21, 1
    s_add_u32 s34, s34, 2                 ; ntiles
    s_mov_b32 s35, 0
    """)
    def dma(stage):
        for jl in range(8):
            a(f"s_add_u32 m0, s32, {stage*65536 + jl*1024}")
            a("s_nop 0")
            a(f"buffer_load_dwordx4 v{DK+jl}, s[12:15], s33 offen lds")
        for jl in range(8):
            a(f"s_add_u32 m0, s32, {stage*65536 + 32768 + jl*1024}")
            a("s_nop 0")
            a(f"buffer_load_dwordx4 v{DV+jl}, s[16:19], s33 offen lds")
        a("s_add_u32 s33, s33, 32768")
    def kread(stage, idx):
        kt, ks = idx >> 4, idx & 15
        f = KF + (idx & 3) * 4
        a(f"ds_read_b128 a[{f}:{f+3}], v{KA+stage*8+(ks&7)} offset:{(ks>>3)*256 + kt*16384}")
    def vread(stage, idx):
        j, dt = idx >> 3, idx & 7
        f = VF + (idx & 3) * 4
        for h in range(2):
            a(f"ds_read_b64_tr_b16 a[{f+2*h}:{f+2*h+1}], v{VA+stage*4+(dt&3)} offset:{(dt>>2)*256 + (16*j+8*h)*512}")
    def tile(stage):
        for i in range(32): a(f"v_mov_b32 v{S+i}, 0")
        for i in range(3): kread(stage, i)
        for idx in range(32):
            if idx + 3 < 32:
                kread(stage, idx+3); a("s_waitcnt lgkmcnt(3)")
            else:
                a(f"s_waitcnt lgkmcnt({31-idx})")
            kt, ks = idx >> 4, idx & 15
            f = KF + (idx & 3) * 4
            a(f"v_mfma_f32_32x32x16_bf16 v[{S+kt*16}:{S+kt*16+15}], a[{f}:{f+3}], a[{ks*4}:{ks*4+3}], v[{S+kt*16}:{S+kt*16+15}]")
        for i in range(3): vread(stage, i)
        a("s_nop 7\ns_nop 7")
        lm = a.newlabel("at_nomask")
        a(f"""
        s_add_u32 s36, s35, 2
        s_cmp_lt_u32 s36, s34
        s_cbranch_scc1 {lm}
        s_lshl_b32 s36, s35, 6
        v_lshrrev_b32 v{T}, 5, v{LANE}
        v_lshlrev_b32 v{T}, 2, v{T}
        v_add_u32 v{T}, s36, v{T}
        """)
        for r in range(32):
            koff = (r >> 4) * 32 + ((r & 15) >> 2) * 8 + (r & 3)
            a(f"v_add_u32 v{T+1}, {koff}, v{T}")
            a(f"v_cmp_le_u32 vcc, v{T+1}, v{QIDX}")
            a(f"v_cndmask_b32 v{S+r}, v{M_+3}, v{S+r}, vcc") if False else None
            a(f"v_mov_b32 v{T+2}, 0xf149f2ca")
            a(f"v_cndmask_b32 v{S+r}, v{T+2}, v{S+r}, vcc")
        a.label(lm)
        a(f"v_max3_f32 v{T}, v{S}, v{S+1}, v{S+2}")
        for r in range(3, 31, 2):
            a(f"v_max3_f32 v{T}, v{T}, v{S+r}, v{S+r+1}")
        a(f"v_max_f32 v{T}, v{T}, v{S+31}")
        a(f"""
        v_mov_b32 v{T+1}, v{T}
        s_nop 1
        v_permlane32_swap_b32 v{T}, v{T+1}
        s_nop 1
        v_max3_f32 v{T}, v{T}, v{T+1}, v{M_}
        v_sub_f32 v{AL}, v{M_}, v{T}
        v_mul_f32 v{AL}, {LOG2E_SC!r}, v{AL}
        v_exp_f32 v{AL}, v{AL}
        v_mov_b32 v{M_}, v{T}
        v_mul_f32 v{T+1}, {-LOG2E_SC!r}, v{T}
        s_mov_b32 s36, {LOG2E_SC!r}
        v_mul_f32 v{L_}, v{L_}, v{AL}
        """)
        for r in range(32):
            a(f"v_fma_f32 v{S+r}, v{S+r}, s36, v{T+1}")
            a(f"v_exp_f32 v{S+r}, v{S+r}")
        a("s_nop 0")
        for r in range(32):
            a(f"v_add_f32 v{L_}, v{L_}, v{S+r}")
        for r in range(16):
            a(f"v_cvt_pk_bf16_f32 v{P+r}, v{S+2*r}, v{S+2*r+1}")
        for i in range(64):
            a(f"v_pk_mul_f32 v[{O+2*i}:{O+2*i+1}], v[{O+2*i}:{O+2*i+1}], v[{AL}:{AL+1}] op_sel_hi:[1,0]")
        a("s_nop 1")
        for idx in range(32):
            if idx + 3 < 32:
                vread(stage, idx+3); a("s_waitcnt lgkmcnt(6)")
            else:
                a(f"s_waitcnt lgkmcnt({2*(31-idx)})")
            j, dt = idx >> 3, idx & 7
            f = VF + (idx & 3) * 4
            a(f"v_mfma_f32_32x32x16_bf16 v[{O+dt*16}:{O+dt*16+15}], a[{f}:{f+3}], v[{P+j*4}:{P+j*4+3}], v[{O+dt*16}:{O+dt*16+15}]")
    dma(0)
    a.label("at_loop")
    for stage in range(2):
        a("s_waitcnt vmcnt(0)")
        a("s_barrier")
        a("s_add_u32 s36, s35, 1")
        a("s_cmp_ge_u32 s36, s34")
        a(f"s_cbranch_scc1 at_nodma{stage}")
        dma(stage ^ 1)
        a.label(f"at_nodma{stage}")
        tile(stage)
        a("s_add_u32 s35, s35, 1")
        a("s_cmp_ge_u32 s35, s34")
        if stage == 0: a("s_cbranch_scc1 at_epi")
        else: a("s_cbranch_scc0 at_loop")
    a.label("at_epi")
    a(f"""
    s_nop 7
    s_nop 7
    s_nop 7
    v_mov_b32 v{T+1}, v{L_}
    s_nop 1
    v_permlane32_swap_b32 v{L_}, v{T+1}
    s_nop 1
    v_add_f32 v{L_}, v{L_}, v{T+1}
    v_rcp_f32 v{AL}, v{L_}
    v_lshlrev_b32 v{T+1}, 13, v{QIDX}
    v_lshrrev_b32 v{T+2}, 5, v{LANE}
    v_lshl_add_u32 v{T+1}, v{T+2}, 3, v{T+1}
    s_lshl_b32 s36, s20, 9
    v_add_u32 v{T+1}, s36, v{T+1}
    """)
    for dt in range(8):
        for g in range(4):
            r = O + dt*16 + g*4
            for j in range(4): a(f"v_mul_f32 v{r+j}, v{r+j}, v{AL}")
            a(f"v_cvt_pk_bf16_f32 v{T+4+(g&1)*2}, v{r}, v{r+1}")
            a(f"v_cvt_pk_bf16_f32 v{T+5+(g&1)*2}, v{r+2}, v{r+3}")
            a(f"buffer_store_dwordx2 v[{T+4+(g&1)*2}:{T+5+(g&1)*2}], v{T+1}, s[28:31], 0 offen offset:{dt*64+g*16}")
    a.label("at_done")
    a("s_endpgm")
    return a.text(), kernel_desc(name, 256+96, 64, accum=256), f"; @launch kernel={name} grid=(256,1,1) block=(256,1,1) lds=131072"
```

```python
from asmlib import *

ACC = 64
FR = [192, 216]

def gen_proj():
    a = Asm()
    name = "proj_kernel"
    a.raw(kernel_header(name))
    a(f"""
    s_cmp_ge_u32 s2, 440
    s_cbranch_scc1 pj_done
    s_load_dwordx2 s[4:5], s[0:1], {ARG['ws']}
    s_load_dwordx2 s[6:7], s[0:1], {ARG['ckv']}
    s_load_dwordx2 s[26:27], s[0:1], {ARG['wuk']}
    s_load_dwordx2 s[28:29], s[0:1], {ARG['wuv']}
    s_load_dwordx2 s[30:31], s[0:1], {ARG['wq']}
    s_load_dwordx2 s[32:33], s[0:1], {ARG['w1']}
    s_load_dwordx2 s[34:35], s[0:1], {ARG['b1']}
    v_lshrrev_b32 v1, 6, v0
    s_nop 0
    v_readfirstlane_b32 s24, v1
    s_waitcnt lgkmcnt(0)
    s_lshr_b32 s3, s2, 7                  ; type 0:k 1:v 2:q 3:h
    s_and_b32 s36, s2, 127
    s_cmp_eq_u32 s3, 3
    s_cselect_b32 s37, 384, 0
    s_sub_u32 s37, s2, s37
    s_cselect_b32 s36, s37, s36           ; idx
    s_and_b32 s38, s36, 7                 ; mtile
    s_lshr_b32 s39, s36, 3                ; ntile
    ; defaults: k
    s_mov_b32 s8, s6
    s_mov_b32 s9, s7
    s_mov_b32 s10, {2048*2048}
    s_mov_b32 s11, 0x20000
    s_mov_b32 s40, 2048                   ; lda
    s_mov_b32 s41, 8192                   ; ldw
    s_mov_b32 s42, 16                     ; nstages
    s_mov_b32 s12, s26
    s_mov_b32 s13, s27
    s_mov_b32 s14, {1024*8192}
    s_mov_b32 s15, 0x20000
    s_mov_b32 s43, {K_OFF}
    s_mov_b32 s44, 512
    s_cmp_eq_u32 s3, 0
    s_cbranch_scc1 pj_setup_done
    s_cmp_eq_u32 s3, 1
    s_cbranch_scc0 pj_not_v
    s_mov_b32 s12, s28
    s_mov_b32 s13, s29
    s_mov_b32 s43, {V_OFF}
    s_branch pj_setup_done
    """)
    a.label("pj_not_v")
    a(f"""
    s_add_u32 s8, s4, {XN_OFF}
    s_addc_u32 s9, s5, 0
    s_mov_b32 s10, {2048*896}
    s_mov_b32 s40, 896
    s_mov_b32 s42, 7
    s_cmp_eq_u32 s3, 2
    s_cbranch_scc0 pj_is_h
    s_mov_b32 s12, s30
    s_mov_b32 s13, s31
    s_mov_b32 s14, {448*8192}
    s_mov_b32 s43, {Q_OFF}
    s_branch pj_setup_done
    """)
    a.label("pj_is_h")
    a(f"""
    s_mov_b32 s12, s32
    s_mov_b32 s13, s33
    s_mov_b32 s14, {448*3584}
    s_mov_b32 s41, 3584
    s_mov_b32 s43, {ACT_OFF}
    s_mov_b32 s44, 3584
    """)
    a.label("pj_setup_done")
    a(f"""
    s_lshl_b32 s45, s39, 20               ; head*1MB
    s_cmp_eq_u32 s3, 3
    s_cselect_b32 s45, 0, s45
    s_add_u32 s43, s43, s45
    s_add_u32 s16, s4, s43
    s_addc_u32 s17, s5, 0
    s_mov_b32 s18, {2048*3584}
    s_cmp_eq_u32 s3, 3
    s_cselect_b32 s18, s18, {2048*512}
    s_mov_b32 s19, 0x20000
    s_lshl_b32 s46, s38, 8                ; m0
    s_lshl_b32 s47, s39, 8                ; n0
    v_and_b32 v2, 63, v0                  ; lane
    """)
    for jl in range(4):
        a(f"""
        s_lshl_b32 s48, s24, 2
        s_add_u32 s48, s48, {jl}          ; j
        v_lshrrev_b32 v3, 3, v2
        s_lshl_b32 s49, s48, 3
        v_add_u32 v3, s49, v3
        v_lshrrev_b32 v4, 1, v3
        v_and_b32 v4, 7, v4
        v_and_b32 v5, 7, v2
        v_xor_b32 v4, v4, v5
        v_add_u32 v3, s46, v3
        v_mul_lo_u32 v3, v3, s40
        v_lshl_add_u32 v{24+jl}, v4, 4, v3
        v_lshrrev_b32 v3, 5, v2
        s_lshl_b32 s49, s48, 1
        v_add_u32 v3, s49, v3             ; k = 2j + lane>>5
        v_and_b32 v4, 3, v3
        v_lshlrev_b32 v4, 2, v4
        v_and_b32 v5, 31, v2
        v_xor_b32 v4, v4, v5
        v_mul_lo_u32 v3, v3, s41
        v_lshl_add_u32 v3, v4, 4, v3
        s_lshl_b32 s49, s47, 1
        v_add_u32 v{28+jl}, s49, v3
        """)
    a(f"""
    s_and_b32 s50, s24, 3                 ; wn
    s_lshr_b32 s51, s24, 2                ; wm
    v_and_b32 v3, 31, v2
    s_lshl_b32 s49, s51, 7
    v_add_u32 v3, s49, v3                 ; row = wm*128 + l%32
    v_lshrrev_b32 v4, 1, v3
    v_and_b32 v4, 7, v4                   ; s
    v_lshrrev_b32 v5, 5, v2               ; half
    v_lshlrev_b32 v3, 7, v3               ; row*128
    """)
    for ks in range(4):
        a(f"""
        v_add_u32 v6, {2*ks}, v5
        v_xor_b32 v6, v6, v4
        v_lshl_add_u32 v{10+ks}, v6, 4, v3
        v_add_u32 v{14+ks}, 0x10000, v{10+ks}
        """)
    a(f"""
    v_lshrrev_b32 v3, 5, v2
    v_lshlrev_b32 v3, 3, v3               ; kbase = (l>>5)*8
    v_bfe_u32 v4, v2, 2, 2                ; r
    v_add_u32 v3, v3, v4                  ; k
    v_lshlrev_b32 v3, 9, v3               ; *512
    v_add_u32 v3, 0x8000, v3
    v_bfe_u32 v5, v2, 4, 1                ; (l>>4)&1
    v_lshlrev_b32 v5, 1, v5               ; nbase/8
    v_bfe_u32 v6, v2, 1, 1                ; c>>1
    v_add_u32 v5, v5, v6
    s_lshl_b32 s49, s50, 3
    v_add_u32 v5, s49, v5
    v_lshlrev_b32 v4, 2, v4               ; r<<2
    v_and_b32 v7, 1, v2
    v_lshlrev_b32 v7, 3, v7               ; 8*(c&1)
    v_xor_b32 v6, v5, v4
    v_lshl_add_u32 v6, v6, 4, v7
    v_add_u32 v18, v3, v6
    v_add_u32 v5, 4, v5
    v_xor_b32 v6, v5, v4
    v_lshl_add_u32 v6, v6, 4, v7
    v_add_u32 v19, v3, v6
    v_add_u32 v20, 0x10000, v18
    v_add_u32 v21, 0x10000, v19
    """)
    for i in range(128):
        a(f"v_mov_b32 v{ACC+i}, 0")
    a("""
    s_lshl_b32 s25, s24, 12               ; wave*4096
    s_mov_b32 s20, 0
    s_mov_b32 s21, 0
    s_lshl_b32 s52, s41, 6                ; 64*ldw
    s_mov_b32 s22, 0
    """)
    def dma(stage):
        for jl in range(4):
            a(f"s_add_u32 m0, s25, {stage*65536 + jl*1024}")
            a("s_nop 0")
            a(f"buffer_load_dwordx4 v{24+jl}, s[8:11], s20 offen lds")
        for jl in range(4):
            a(f"s_add_u32 m0, s25, {stage*65536 + 32768 + jl*1024}")
            a("s_nop 0")
            a(f"buffer_load_dwordx4 v{28+jl}, s[12:15], s21 offen lds")
        a("s_add_u32 s20, s20, 128")
        a("s_add_u32 s21, s21, s52")
    def reads(stage, ks, fs):
        f = FR[fs]
        for nt in range(2):
            for h in range(2):
                a(f"ds_read_b64_tr_b16 v[{f+nt*4+h*2}:{f+nt*4+h*2+1}], v{18+stage*2+nt} offset:{ks*8192+h*2048}")
        for mt in range(4):
            a(f"ds_read_b128 v[{f+8+mt*4}:{f+8+mt*4+3}], v{10+stage*4+ks} offset:{mt*4096}")
    def compute(stage):
        reads(stage, 0, 0)
        for ks in range(4):
            fs = ks & 1
            if ks < 3:
                reads(stage, ks+1, fs ^ 1)
                a("s_waitcnt lgkmcnt(8)")
            else:
                a("s_waitcnt lgkmcnt(0)")
            f = FR[fs]
            for nt in range(2):
                for mt in range(4):
                    c = ACC + (nt*4+mt)*16
                    a(f"v_mfma_f32_32x32x16_bf16 v[{c}:{c+15}], v[{f+nt*4}:{f+nt*4+3}], v[{f+8+mt*4}:{f+8+mt*4+3}], v[{c}:{c+15}]")
    dma(0)
    a.label("pj_loop")
    for stage in range(2):
        a("s_waitcnt vmcnt(0)")
        a("s_barrier")
        a("s_add_u32 s22, s22, 1")
        a("s_cmp_ge_u32 s22, s42")
        a(f"s_cbranch_scc1 pj_nodma{stage}")
        dma(stage ^ 1)
        a.label(f"pj_nodma{stage}")
        compute(stage)
        a("s_cmp_ge_u32 s22, s42")
        if stage == 0:
            a("s_cbranch_scc1 pj_epi")
        else:
            a("s_cbranch_scc0 pj_loop")
    a.label("pj_epi")
    a(f"""
    v_and_b32 v3, 31, v2
    s_lshl_b32 s49, s51, 7
    s_add_u32 s49, s49, s46
    v_add_u32 v3, s49, v3
    v_mul_lo_u32 v3, v3, s44
    v_lshrrev_b32 v4, 5, v2
    v_lshlrev_b32 v4, 3, v4
    v_add_u32 v3, v3, v4
    s_lshl_b32 s49, s50, 7
    s_lshl_b32 s53, s47, 1
    s_cmp_eq_u32 s3, 3
    s_cselect_b32 s53, s53, 0
    s_add_u32 s49, s49, s53
    v_add_u32 v3, s49, v3
    s_lshl_b32 s54, s44, 5                ; 32 rows
    s_nop 7
    s_nop 7
    s_cmp_eq_u32 s3, 3
    s_cbranch_scc1 pj_epi_h
    """)
    for mt in range(4):
        if mt == 0: a("s_mov_b32 s55, 0")
        else: a("s_add_u32 s55, s55, s54")
        for nt in range(2):
            c = ACC + (nt*4+mt)*16
            for g in range(4):
                a(f"v_cvt_pk_bf16_f32 v{4+(g&1)*2}, v{c+g*4}, v{c+g*4+1}")
                a(f"v_cvt_pk_bf16_f32 v{5+(g&1)*2}, v{c+g*4+2}, v{c+g*4+3}")
                a(f"buffer_store_dwordx2 v[{4+(g&1)*2}:{5+(g&1)*2}], v3, s[16:19], s55 offen offset:{nt*64+g*16}")
    a("s_branch pj_done")
    a.label("pj_epi_h")
    a(f"""
    s_mov_b32 s28, s34
    s_mov_b32 s29, s35
    s_mov_b32 s30, 3584
    s_mov_b32 s31, 0x20000
    v_lshrrev_b32 v4, 5, v2
    v_lshlrev_b32 v4, 3, v4
    v_add_u32 v4, s49, v4
    """)
    for nt in range(2):
        for g in range(4):
            a(f"buffer_load_dwordx2 v[{32+(nt*4+g)*2}:{33+(nt*4+g)*2}], v4, s[28:31], 0 offen offset:{nt*64+g*16}")
    a("s_waitcnt vmcnt(0)")
    for i in range(16):
        a(f"v_lshlrev_b32 v{240}, 16, v{32+i}")
        a(f"v_and_b32 v{241}, 0xffff0000, v{32+i}")
        a(f"v_mov_b32 v{192+2*i}, v240")
        a(f"v_mov_b32 v{193+2*i}, v241")
    for mt in range(4):
        if mt == 0: a("s_mov_b32 s55, 0")
        else: a("s_add_u32 s55, s55, s54")
        for nt in range(2):
            c = ACC + (nt*4+mt)*16
            for g in range(4):
                for j in range(4):
                    r = c+g*4+j
                    b = 192 + (nt*4+g)*4 + j
                    a(f"""
                    v_cvt_pk_bf16_f32 v240, v{r}, v{r}
                    v_lshlrev_b32 v240, 16, v240
                    v_add_f32 v240, v240, v{b}
                    v_cvt_pk_bf16_f32 v240, v240, v240
                    v_lshlrev_b32 v240, 16, v240
                    v_min_f32 v241, 0x41a00000, v240
                    v_mul_f32 v241, 0x3fb8aa3b, v241
                    v_exp_f32 v241, v241
                    s_nop 0
                    v_add_f32 v242, 2.0, v241
                    v_mul_f32 v242, v242, v241
                    v_add_f32 v241, 2.0, v242
                    v_rcp_f32 v241, v241
                    s_nop 0
                    v_mul_f32 v242, v242, v241
                    v_mul_f32 v{r}, v240, v242
                    """)
                a(f"v_cvt_pk_bf16_f32 v{4+(g&1)*2}, v{c+g*4}, v{c+g*4+1}")
                a(f"v_cvt_pk_bf16_f32 v{5+(g&1)*2}, v{c+g*4+2}, v{c+g*4+3}")
                a(f"buffer_store_dwordx2 v[{4+(g&1)*2}:{5+(g&1)*2}], v3, s[16:19], s55 offen offset:{nt*64+g*16}")
    a.label("pj_done")
    a("s_endpgm")
    return a.text(), kernel_desc(name, 248, 64), f"; @launch kernel={name} grid=(440,1,1) block=(512,1,1) lds=131072"
```

```python
from asmlib import *

def gen_ln():
    a = Asm()
    name = "ln_kernel"
    a.raw(kernel_header(name))
    a(f"""
    s_cmp_ge_u32 s2, 512
    s_cbranch_scc1 ln_done
    s_load_dwordx2 s[4:5], s[0:1], {ARG['x']}
    s_load_dwordx2 s[6:7], s[0:1], {ARG['ws']}
    v_and_b32 v1, 63, v0
    v_lshrrev_b32 v2, 6, v0
    s_lshl_b32 s3, s2, 2
    v_add_u32 v2, s3, v2
    s_mov_b32 s3, 896
    v_mul_lo_u32 v3, v2, s3
    v_lshl_add_u32 v3, v1, 4, v3
    s_waitcnt lgkmcnt(0)
    s_mov_b32 s8, s4
    s_mov_b32 s9, s5
    s_mov_b32 s10, {2048*896}
    s_mov_b32 s11, 0x20000
    s_add_u32 s12, s6, {XN_OFF}
    s_addc_u32 s13, s7, 0
    s_mov_b32 s14, {2048*896}
    s_mov_b32 s15, 0x20000
    v_mov_b32 v4, 0
    v_mov_b32 v5, 0
    v_mov_b32 v6, 0
    v_mov_b32 v7, 0
    v_cmp_gt_u32 vcc, 56, v1
    s_and_saveexec_b64 s[16:17], vcc
    buffer_load_dwordx4 v[4:7], v3, s[8:11], 0 offen
    s_mov_b64 exec, s[16:17]
    s_waitcnt vmcnt(0)
    """)
    for i in range(4):
        a(f"v_lshlrev_b32 v{10+2*i}, 16, v{4+i}")
        a(f"v_and_b32 v{11+2*i}, 0xffff0000, v{4+i}")
    a("v_add_f32 v20, v10, v11")
    for i in range(2, 8):
        a(f"v_add_f32 v20, v20, v{10+i}")
    def reduce(reg, tmp):
        for off in (0x041F, 0x081F, 0x101F, 0x201F, 0x401F):
            a(f"ds_swizzle_b32 v{tmp}, v{reg} offset:{off:#x}")
            a("s_waitcnt lgkmcnt(0)")
            a(f"v_add_f32 v{reg}, v{reg}, v{tmp}")
        a(f"v_mov_b32 v{tmp}, v{reg}")
        a("s_nop 1")
        a(f"v_permlane32_swap_b32 v{reg}, v{tmp}")
        a("s_nop 1")
        a(f"v_add_f32 v{reg}, v{reg}, v{tmp}")
    reduce(20, 21)
    a(f"""
    v_mul_f32 v20, {1.0/448!r}, v20
    v_mov_b32 v22, 0
    """)
    a("v_cmp_gt_u32 vcc, 56, v1")
    for i in range(8):
        a(f"v_sub_f32 v23, v{10+i}, v20")
        a(f"v_fmac_f32 v22, v23, v23")
    a("v_cndmask_b32 v22, 0, v22, vcc")
    reduce(22, 21)
    a(f"""
    v_mul_f32 v22, {1.0/448!r}, v22
    v_cvt_pk_bf16_f32 v24, v20, v22
    v_lshlrev_b32 v25, 16, v24
    v_and_b32 v26, 0xffff0000, v24
    v_add_f32 v26, {1e-5!r}, v26
    v_cvt_pk_bf16_f32 v26, v26, v26
    v_lshlrev_b32 v26, 16, v26
    v_sqrt_f32 v26, v26
    s_nop 0
    v_cvt_pk_bf16_f32 v26, v26, v26
    v_lshlrev_b32 v26, 16, v26
    v_rcp_f32 v27, v26
    s_nop 0
    """)
    for i in range(4):
        a(f"v_sub_f32 v28, v{10+2*i}, v25")
        a(f"v_sub_f32 v29, v{11+2*i}, v25")
        a(f"v_cvt_pk_bf16_f32 v30, v28, v29")
        a(f"v_lshlrev_b32 v28, 16, v30")
        a(f"v_and_b32 v29, 0xffff0000, v30")
        a(f"v_mul_f32 v28, v28, v27")
        a(f"v_mul_f32 v29, v29, v27")
        a(f"v_cvt_pk_bf16_f32 v{4+i}, v28, v29")
    a("""
    v_cmp_gt_u32 vcc, 56, v1
    s_and_saveexec_b64 s[16:17], vcc
    buffer_store_dwordx4 v[4:7], v3, s[12:15], 0 offen
    s_mov_b64 exec, s[16:17]
    """)
    a.label("ln_done")
    a("s_endpgm")
    return a.text(), kernel_desc(name, 32, 24), f"; @launch kernel={name} grid=(512,1,1) block=(256,1,1) lds=0"
```

```python
from asmlib import *

def gen_out():
    a = Asm()
    name = "out_kernel"
    a.raw(kernel_header(name))
    STG = 32768
    a(f"""
    s_cmp_ge_u32 s2, 224
    s_cbranch_scc1 ok_done
    s_load_dwordx2 s[4:5], s[0:1], {ARG['ws']}
    s_load_dwordx2 s[6:7], s[0:1], {ARG['wo']}
    s_load_dwordx2 s[26:27], s[0:1], {ARG['w2']}
    s_load_dwordx2 s[28:29], s[0:1], {ARG['x']}
    s_load_dwordx2 s[30:31], s[0:1], {ARG['out']}
    v_lshrrev_b32 v1, 6, v0
    v_and_b32 v2, 63, v0
    s_nop 0
    v_readfirstlane_b32 s24, v1
    s_lshr_b32 s38, s2, 3
    s_and_b32 s39, s2, 7
    s_waitcnt lgkmcnt(0)
    """)
    a(f"""
    s_mul_hi_u32 s38, s2, 0x24924925
    s_sub_u32 s39, s2, s38
    s_lshr_b32 s39, s39, 1
    s_add_u32 s38, s38, s39
    s_lshr_b32 s38, s38, 2
    s_mul_i32 s39, s38, 7
    s_sub_u32 s39, s2, s39                 ; ntile
    s_lshl_b32 s46, s38, 6                 ; m0
    s_lshl_b32 s47, s39, 6                 ; n0
    s_lshl_b32 s25, s24, 12                ; wave*4096
    """)
    for i in range(32): a(f"v_mov_b32 v{64+i}, 0")
    a(f"""
    s_and_b32 s50, s24, 1                  ; wn
    s_lshr_b32 s51, s24, 1                 ; wm
    v_and_b32 v3, 31, v2
    s_lshl_b32 s49, s51, 5
    v_add_u32 v3, s49, v3                  ; row
    v_and_b32 v4, 15, v3
    v_lshrrev_b32 v5, 5, v2
    v_lshlrev_b32 v3, 8, v3
    """)
    for k8 in range(8):
        a(f"""
        v_add_u32 v6, {2*k8}, v5
        v_xor_b32 v6, v6, v4
        v_lshl_add_u32 v{10+k8}, v6, 4, v3
        """)
    a(f"""
    v_lshrrev_b32 v3, 5, v2
    v_lshlrev_b32 v3, 3, v3
    v_bfe_u32 v4, v2, 2, 2
    v_add_u32 v3, v3, v4                   ; k
    v_lshrrev_b32 v4, 1, v3
    v_and_b32 v4, 1, v4
    v_lshlrev_b32 v4, 2, v4
    v_lshlrev_b32 v3, 7, v3
    v_add_u32 v3, 0x4000, v3
    v_bfe_u32 v5, v2, 4, 1
    v_lshlrev_b32 v5, 1, v5
    v_bfe_u32 v6, v2, 1, 1
    v_add_u32 v5, v5, v6
    s_lshl_b32 s49, s50, 2
    v_add_u32 v5, s49, v5
    v_xor_b32 v5, v5, v4
    v_and_b32 v7, 1, v2
    v_lshlrev_b32 v7, 3, v7
    v_lshl_add_u32 v5, v5, 4, v7
    v_add_u32 v18, v3, v5
    v_add_u32 v56, 0x10000, v18
    """)
    for k8 in range(8): a(f"v_add_u32 v{48+k8}, 0x10000, v{10+k8}")
    def phase(ph, nst, accb):
        if ph == 0:
            a(f"""
            s_add_u32 s8, s4, {CTX_OFF}
            s_addc_u32 s9, s5, 0
            s_mov_b32 s10, {2048*8192}
            s_mov_b32 s11, 0x20000
            s_mov_b32 s40, 8192
            s_mov_b32 s12, s6
            s_mov_b32 s13, s7
            s_mov_b32 s14, {4096*896}
            s_mov_b32 s15, 0x20000
            """)
        else:
            a(f"""
            s_add_u32 s8, s4, {ACT_OFF}
            s_addc_u32 s9, s5, 0
            s_mov_b32 s10, {2048*3584}
            s_mov_b32 s40, 3584
            s_mov_b32 s12, s26
            s_mov_b32 s13, s27
            s_mov_b32 s14, {1792*896}
            """)
        for jl in range(4):
            a(f"""
            s_lshl_b32 s48, s24, 2
            s_add_u32 s48, s48, {jl}
            v_lshrrev_b32 v3, 4, v2
            s_lshl_b32 s49, s48, 2
            v_add_u32 v3, s49, v3
            v_and_b32 v4, 15, v3
            v_and_b32 v5, 15, v2
            v_xor_b32 v4, v4, v5
            v_add_u32 v3, s46, v3
            v_mul_lo_u32 v3, v3, s40
            v_lshl_add_u32 v{24+jl}, v4, 4, v3
            v_lshrrev_b32 v3, 3, v2
            s_lshl_b32 s49, s48, 3
            v_add_u32 v3, s49, v3
            v_lshrrev_b32 v4, 1, v3
            v_and_b32 v4, 1, v4
            v_lshlrev_b32 v4, 2, v4
            v_and_b32 v5, 7, v2
            v_xor_b32 v4, v4, v5
            s_movk_i32 s49, 896
            v_mul_lo_u32 v3, v3, s49
            v_lshl_add_u32 v3, v4, 4, v3
            s_lshl_b32 s49, s47, 1
            v_add_u32 v{28+jl}, s49, v3
            """)
        a(f"""
        s_mov_b32 s20, 0
        s_mov_b32 s21, 0
        s_mov_b32 s22, 0
        """)
        def dma(stage):
            for jl in range(4):
                a(f"s_add_u32 m0, s25, {stage*STG + jl*1024}")
                a("s_nop 0")
                a(f"buffer_load_dwordx4 v{24+jl}, s[8:11], s20 offen lds")
            for jl in range(4):
                a(f"s_add_u32 m0, s25, {stage*STG + 16384 + jl*1024}")
                a("s_nop 0")
                a(f"buffer_load_dwordx4 v{28+jl}, s[12:15], s21 offen lds")
            a("s_add_u32 s20, s20, 256")
            a(f"s_add_u32 s21, s21, {128*896}")
        def compute(stage):
            for ks in range(8):
                f = 32 + (ks & 1) * 8
                so = stage*STG if stage < 2 else 0
                wa = 18 if stage < 2 else 56
                ba = 10 if stage < 2 else 48
                a(f"ds_read_b64_tr_b16 v[{f}:{f+1}], v{wa} offset:{so + ks*2048}")
                a(f"ds_read_b64_tr_b16 v[{f+2}:{f+3}], v{wa} offset:{so + ks*2048 + 512}")
                a(f"ds_read_b128 v[{f+4}:{f+7}], v{ba+ks} offset:{so}")
                if ks >= 1:
                    f2 = 32 + ((ks-1) & 1) * 8
                    a("s_waitcnt lgkmcnt(3)")
                    a(f"v_mfma_f32_32x32x16_bf16 v[{accb}:{accb+15}], v[{f2}:{f2+3}], v[{f2+4}:{f2+7}], v[{accb}:{accb+15}]")
            f2 = 32 + 8
            a("s_waitcnt lgkmcnt(0)")
            a(f"v_mfma_f32_32x32x16_bf16 v[{accb}:{accb+15}], v[{f2}:{f2+3}], v[{f2+4}:{f2+7}], v[{accb}:{accb+15}]")
        a("s_barrier")
        dma(0); dma(1)
        a.label(f"ok_loop{ph}")
        for stage in range(3):
            a("s_waitcnt vmcnt(8)")
            a("s_barrier")
            a("s_add_u32 s22, s22, 1")
            a("s_add_u32 s23, s22, 1")
            a(f"s_cmp_ge_u32 s23, {nst}")
            lab = a.newlabel("ok_nd")
            a(f"s_cbranch_scc1 {lab}_w")
            dma((stage + 2) % 3)
            a(f"s_branch {lab}")
            a.label(lab + "_w")
            a("s_waitcnt vmcnt(0)")
            a("s_barrier") if False else None
            a.label(lab)
            compute(stage)
            a(f"s_cmp_ge_u32 s22, {nst}")
            if stage < 2: a(f"s_cbranch_scc1 ok_end{ph}")
            else: a(f"s_cbranch_scc0 ok_loop{ph}")
        a.label(f"ok_end{ph}")
    phase(0, 32, 64)
    phase(1, 14, 80)
    a(f"""
    s_mov_b32 s8, s28
    s_mov_b32 s9, s29
    s_mov_b32 s10, {2048*896}
    s_mov_b32 s11, 0x20000
    s_mov_b32 s12, s30
    s_mov_b32 s13, s31
    s_mov_b32 s14, {2048*896}
    s_mov_b32 s15, 0x20000
    v_and_b32 v3, 31, v2
    s_lshl_b32 s49, s51, 5
    s_add_u32 s49, s49, s46
    v_add_u32 v3, s49, v3
    s_movk_i32 s49, 896
    v_mul_lo_u32 v3, v3, s49
    v_lshrrev_b32 v4, 5, v2
    v_lshl_add_u32 v3, v4, 3, v3
    s_lshl_b32 s49, s50, 6
    s_lshl_b32 s48, s47, 1
    s_add_u32 s49, s49, s48
    v_add_u32 v3, s49, v3
    """)
    for g in range(4):
        a(f"buffer_load_dwordx2 v[{40+2*g}:{41+2*g}], v3, s[8:11], 0 offen offset:{g*16}")
    a("s_nop 7\ns_nop 7\ns_waitcnt vmcnt(0)")
    for g in range(4):
        for j in range(4):
            rs, rg = 64+g*4+j, 80+g*4+j
            xr = 40 + 2*g + (j >> 1)
            a(f"""
            v_cvt_pk_bf16_f32 v4, v{rs}, v{rg}
            v_lshlrev_b32 v5, 16, v4
            v_and_b32 v6, 0xffff0000, v4
            v_mul_f32 v7, 0xbfb8aa3b, v6
            v_exp_f32 v7, v7
            s_nop 0
            v_add_f32 v7, 1.0, v7
            v_rcp_f32 v7, v7
            s_nop 0
            v_mul_f32 v6, v6, v7
            v_cvt_pk_bf16_f32 v6, v6, v6
            v_lshlrev_b32 v6, 16, v6
            v_mul_f32 v5, v5, v6
            v_cvt_pk_bf16_f32 v5, v5, v5
            v_lshlrev_b32 v5, 16, v5
            """)
            if j & 1: a(f"v_and_b32 v6, 0xffff0000, v{xr}")
            else: a(f"v_lshlrev_b32 v6, 16, v{xr}")
            a(f"v_add_f32 v{8+j}, v5, v6")
        a("v_cvt_pk_bf16_f32 v20, v8, v9")
        a("v_cvt_pk_bf16_f32 v21, v10, v11")
        a(f"buffer_store_dwordx2 v[20:21], v3, s[12:15], 0 offen offset:{g*16}")
    a.label("ok_done")
    a("s_endpgm")
    return a.text(), kernel_desc(name, 96, 64), f"; @launch kernel={name} grid=(224,1,1) block=(256,1,1) lds={3*STG}"
```

```python
import sys, os
sys.path.insert(0, os.path.dirname(__file__))
from asmlib import *
import importlib

def build(kernels, out):
    hdr = open("recurrent_scan__compressed_kv_cla__dense_activation_mish__prompt.s.ref").read().split("; @launch")[0]
    s = hdr
    texts, descs = [], []
    for k in kernels:
        t, d, l = k
        s += l + "\n"
        texts.append(t); descs.append(d)
    s += '.amdgcn_target "amdgcn-amd-amdhsa--gfx950"\n.text\n'
    s += "\n".join(texts)
    s += "\n".join(descs)
    open(out, "w").write(s)

if __name__ == "__main__":
    import k_ln, k_gemm
    ks = [k_ln.gen_ln(), k_gemm.gen_proj()]
    try:
        import k_attn; ks.append(k_attn.gen_attn())
        import k_out; ks.append(k_out.gen_out())
    except ImportError as e:
        print("skip", e)
    out = sys.argv[1] if len(sys.argv) > 1 else "recurrent_scan__compressed_kv_cla__dense_activation_mish__prompt.s"
    build(ks, out)
    print("wrote", out)
```
